```python
import torch

def _softmax(x, axis=-1):
    return torch.softmax(x, dim=axis)
def _gelu(x):
    return torch.nn.functional.gelu(x, approximate="tanh")
def _silu(x):
    return torch.nn.functional.silu(x)
def _sigmoid(x):
    return torch.sigmoid(x)
def _layernorm(x, axis=-1, eps=1e-5):
    m = x.mean(dim=axis, keepdim=True)
    v = x.var(dim=axis, keepdim=True, unbiased=False)
    return (x - m) / torch.sqrt(v + eps)
def _scatter_add(tgt, idx, src, axis=0):
    return tgt.clone().index_add_(axis, idx, src)
def _segment_sum(src, seg, n):
    out = torch.zeros((n,) + src.shape[1:], dtype=src.dtype)
    return out.index_add_(0, seg, src)
def _pad(x, pw):
    flat = tuple(v for pair in reversed(pw) for v in pair)
    return torch.nn.functional.pad(x, flat)

kernel_name = 'recurrent_scan__sliding_block_cached__glu_gated_reglu__decode'

def setup_inputs():

    _w = (lambda a: (lambda t: t.to(torch.bfloat16) if t.is_floating_point() else t)(torch.as_tensor(a)))
    def _A_setup():
        B, Sq, D = 1, 1, 640
        Hq, Hkv, Sk, Dh = 32, 32, 8192, 192
        assert Hq % Hkv == 0, (Hq, Hkv)
        return {
            "x": _w((lambda *s: torch.randn(*s, dtype=torch.bfloat16) * 0.05)(B, Sq, D)),
            "k_cache": _w((lambda *s: torch.randn(*s, dtype=torch.bfloat16) * 3.2)(B, Hkv, Sk, Dh)),
            "v_cache": _w((lambda *s: torch.randn(*s, dtype=torch.bfloat16) * 3.2)(B, Hkv, Sk, Dh)),
            "wq": _w((lambda *s: torch.randn(*s, dtype=torch.bfloat16) * 3.2)(D, Hq * Dh) * (D ** -0.5)),
            "wo": _w((lambda *s: torch.randn(*s, dtype=torch.bfloat16) * 3.2)(Hq * Dh, D) * ((Hq * Dh) ** -0.5)),
        }
    _A_in = _A_setup()

    def _B_setup():
        B, S, D, F = 1, 1, 640, 1536
        return {
            "x": _w((lambda *s: torch.randn(*s, dtype=torch.bfloat16) * 0.05)(B, S, D)),
            "W_gate": _w((lambda *s: torch.randn(*s, dtype=torch.bfloat16) * 0.4)(D, F) * (2.0 / D) ** 0.5),
            "W_up": _w((lambda *s: torch.randn(*s, dtype=torch.bfloat16) * 0.4)(D, F) * (2.0 / D) ** 0.5),
            "W_down": _w((lambda *s: torch.randn(*s, dtype=torch.bfloat16) * 0.4)(F, D) * (1.0 / F) ** 0.5),
        }
    _B_in = _B_setup()

    return {
        "A_x": _A_in["x"],
        "A_k_cache": _A_in["k_cache"],
        "A_v_cache": _A_in["v_cache"],
        "A_wq": _A_in["wq"],
        "A_wo": _A_in["wo"],
        "B_x": _B_in["x"],
        "B_W_gate": _B_in["W_gate"],
        "B_W_up": _B_in["W_up"],
        "B_W_down": _B_in["W_down"],
    }

def reference(A_x, A_k_cache, A_v_cache, A_wq, A_wo, B_x, B_W_gate, B_W_up, B_W_down):
    def _A_ref(x, k_cache, v_cache, wq, wo):
        B, Sq, D = x.shape
        Hq, Dh = 32, 192
        Hkv, Sk = k_cache.shape[1], k_cache.shape[2]
        W = min(4096, max(256, Sk // 4))
        rep = Hq // Hkv
        q = (lambda x, *d: x.permute(*d))((x @ wq).reshape(B, Sq, Hq, Dh), 0, 2, 1, 3)
        k = (lambda x, n, axis: torch.repeat_interleave(x, n, dim=axis))(k_cache[:, :, Sk - W:, :], rep, axis=1)
        v = (lambda x, n, axis: torch.repeat_interleave(x, n, dim=axis))(v_cache[:, :, Sk - W:, :], rep, axis=1)
        scores = torch.einsum("bhqd,bhkd->bhqk", q, k) * (Dh ** -0.5)
        p = _softmax(scores, axis=-1)
        o = torch.einsum("bhqk,bhkd->bhqd", p, v)
        return (lambda x, *d: x.permute(*d))(o, 0, 2, 1, 3).reshape(B, Sq, Hq * Dh) @ wo

    def _B_ref(x, W_gate, W_up, W_down):
        gate = torch.einsum("bsd,df->bsf", x, W_gate)
        up = torch.einsum("bsd,df->bsf", x, W_up)
        gate = gate * (lambda x, dt: x.to(dt))(gate > 0, gate.dtype)
        h = gate * up
        return torch.einsum("bsf,fd->bsd", h, W_down)

    x = A_x
    xn = _layernorm(x, axis=-1)
    s = _A_ref(xn, A_k_cache, A_v_cache, A_wq, A_wo)
    g = _silu(_B_ref(xn, B_W_gate, B_W_up, B_W_down))
    return x + s * g
```

```python
import re
def regs(tok):
    tok = tok.strip()
    neg = tok.lstrip("-")
    m = re.fullmatch(r"([vsa])\[(\d+):(\d+)\]", neg)
    if m: return [(m.group(1), i) for i in range(int(m.group(2)), int(m.group(3)) + 1)]
    m = re.fullmatch(r"([vsa])(\d+)", neg)
    if m: return [(m.group(1), int(m.group(2)))]
    if neg == "vcc": return [("s", "vcc")]
    if neg == "exec": return [("s", "exec")]
    return []
TRANS = ("v_exp_f32", "v_rcp_f32", "v_sqrt_f32", "v_rsq_f32", "v_log_f32")
def parse(line):
    line = line.split(";")[0].strip()
    if not line or line.endswith(":") or line.startswith("."): return None
    parts = line.split(None, 1)
    op = parts[0]
    ops = [o.strip() for o in parts[1].split(",")] if len(parts) > 1 else []
    last = ops[-1].split() if ops else []
    mods = " ".join(last[1:]) if last else ""
    if ops: ops[-1] = last[0]
    d = dict(op=op, ops=ops, mods=mods, text=line)
    dst, src = [], []
    isv = op.startswith("v_")
    if op.startswith("buffer_load") or op.startswith("global_load"):
        dst = regs(ops[0]); src = sum((regs(o) for o in ops[1:]), [])
    elif op.startswith("buffer_store"):
        src = sum((regs(o) for o in ops), []); d["sdata"] = regs(ops[0])
    elif op.startswith("ds_read"):
        dst = regs(ops[0]); src = regs(ops[1])
    elif op.startswith("ds_write") or op.startswith("ds_add"):
        src = sum((regs(o) for o in ops), [])
    elif op.startswith("v_cmp"):
        dst = regs(ops[0]); src = sum((regs(o) for o in ops[1:]), [])
    elif op.startswith("v_permlane"):
        dst = regs(ops[0]) + regs(ops[1]); src = list(dst)
    elif isv:
        dst = regs(ops[0]); src = sum((regs(o) for o in ops[1:]), [])
        if op.startswith(("v_fmac", "v_dot2c")): src += dst
        if op.startswith("v_cndmask") and len(ops) == 3: src.append(("s", "vcc"))
        if "dpp" in op or "row_" in mods or "quad_perm" in mods:
            d["dpp"] = regs(ops[1])
            if "row_mask:0xf" not in mods: src += dst
    elif op.startswith("s_"):
        if op in ("s_waitcnt", "s_nop", "s_barrier", "s_endpgm", "s_branch", "s_sleep", "s_setprio") or op.startswith("s_cbranch"):
            pass
        elif op.startswith("s_cmp"):
            src = sum((regs(o) for o in ops), [])
        else:
            dst = regs(ops[0]); src = sum((regs(o) for o in ops[1:]), [])
    d["dst"], d["src"] = dst, src
    d["valu"] = isv
    d["mfma"] = op.startswith("v_mfma")
    d["states"] = int(ops[0]) + 1 if op == "s_nop" else 1
    return d
def check(text):
    ins = [p for p in (parse(l) for l in text.splitlines()) if p]
    errs = []
    for i, c in enumerate(ins):
        need = []
        dist = 0
        for j in range(i - 1, max(-1, i - 24), -1):
            p = ins[j]
            pd = set(p["dst"])
            cs = set(c["src"]); cd = set(c["dst"])
            vm = c["op"].startswith(("buffer_", "global_", "ds_"))
            req = 0; why = ""
            if p["valu"] and not p["mfma"]:
                vreg = {r for r in pd if r[0] == "v"}; sreg = {r for r in pd if r[0] == "s"}
                if c["mfma"] and vreg & cs: req, why = 2, "VALU->MFMA"
                if c.get("dpp") and vreg & set(c["dpp"]): req, why = max(req, 2), "VALU->DPP"
                if c["op"].startswith("v_permlane") and vreg & cs: req, why = max(req, 2), "VALU->permlane"
                if c["op"].startswith(("v_readlane", "v_readfirstlane")) and vreg & cs: req, why = max(req, 1), "VALU->readlane"
                if c["valu"] and sreg & cs: req, why = max(req, 2), "VALU sgpr->VALU"
                if c["op"].startswith(("buffer_", "global_")) and sreg & cs: req, why = max(req, 5), "VALU sgpr->VMEM"
                if p["op"].startswith(TRANS) and c["valu"] and not c["op"].startswith(TRANS) and vreg & cs: req, why = max(req, 1), "trans->VALU"
                if p["op"].startswith("v_dot") and vreg & (cs | cd) and not (c["op"] == p["op"]): req, why = max(req, 3), "dot->other"
                if not c["valu"] and c["op"].startswith("s_") and sreg & cs: req, why = max(req, 1), "VALU sgpr->SALU(pad)"
            if p["mfma"]:
                if c["mfma"]:
                    cc = set(regs(c["ops"][3])); ab = set(regs(c["ops"][1]) + regs(c["ops"][2]))
                    if pd & ab: req, why = 8, "MFMA->MFMA AB"
                    if pd & cc and pd != cc: req, why = max(req, 6), "MFMA->MFMA C overlap"
                elif pd & (cs | cd): req, why = 8, "MFMA D->other"
                pc = set(regs(p["ops"][3]))
                if c["valu"] and not c["mfma"] and pc & cd: req, why = max(req, 3), "MFMA srcC WAR"
            if p.get("sdata") and len(p["sdata"]) >= 3 and set(p["sdata"]) & cd:
                req, why = max(req, 2 if c["valu"] else 1), "wide store WAR"
            if req > dist: errs.append(f"{why}: need {req} have {dist}\n    {p['text']}\n    {c['text']}")
            dist += p["states"]
            if dist >= 12: break
    return errs
if __name__ == "__main__":
    import sys
    e = check(open(sys.argv[1]).read())
    print("\n".join(e) if e else "no hazards found")
```

```python
import sys
NAME = "recurrent_scan__sliding_block_cached__glu_gated_reglu__decode_kernel"

QP, GP, OP, MLO, SP, STAMP = 0x1000, 0x80000, 0xC0000, 0x130000, 0x140000, 0x200000
XN, WSCR, QL, HP, OW, MLW, OPK, SB, LDS_BYTES = 0, 2560, 6656, 7040, 7168, 13312, 13344, 13856, 18432
L2E = 0x3fb8aa3b
SCALE = 0x3d93cd3a
INV640 = 0x3acccccd
EPS = 0x3727c5ac
SPIN = 1 << 15

class G:
    def __init__(s, diag=False, **opt):
        s.L = []; s.diag = diag; s.opt = opt; s.nst = 0
    def a(s, t):
        for l in t.split("\n"):
            l = l.strip()
            if l: s.L.append(l)
    def c(s, t): s.L.append("; " + t)
    def stamp(s, k):
        if s.diag: s.a(f"s_memrealtime s[{76+2*k}:{77+2*k}]")
    def nop(s, n):
        s.a(f"s_nop {n-1}")
    def srd(s, d, base, off, size):
        if off is None:
            s.a(f"s_mov_b32 s{d}, s{base}\ns_mov_b32 s{d+1}, s{base+1}")
        else:
            s.a(f"s_add_u32 s{d}, s{base}, {off}\ns_addc_u32 s{d+1}, s{base+1}, 0")
        s.a(f"s_mov_b32 s{d+2}, {size}\ns_mov_b32 s{d+3}, 0x20000")
    def masks(s, t=26):
        s.c("selector masks v4..v7: 16 bits set at element (lane & 7)")
        s.a(f"""v_and_b32 v9, 3, v2
        v_lshlrev_b32 v9, 4, v9
        v_mov_b32 v4, 0xffff
        v_mov_b32 v5, 0
        v_lshlrev_b64 v[{t}:{t+1}], v9, v[4:5]
        v_lshrrev_b32 v9, 2, v2
        v_add_u32 v9, -1, v9
        v_and_b32 v4, v{t}, v9
        v_and_b32 v5, v{t+1}, v9
        v_not_b32 v9, v9
        v_and_b32 v6, v{t}, v9
        v_and_b32 v7, v{t+1}, v9""")
    def dpp(s, op, v, ctrl, mask="0xf"):
        s.a(f"{op}_dpp v{v}, v{v}, v{v} {ctrl} row_mask:{mask} bank_mask:0xf")
    def wave_sum(s, v, sd):
        for ctrl, m in (("quad_perm:[1,0,3,2]", "0xf"), ("quad_perm:[2,3,0,1]", "0xf"), ("row_half_mirror", "0xf"),
                        ("row_mirror", "0xf"), ("row_bcast:15", "0xa"), ("row_bcast:31", "0xc")):
            s.nop(2); s.dpp("v_add_f32", v, ctrl, m)
        s.nop(1); s.a(f"v_readlane_b32 s{sd}, v{v}, 63")
    def tag(s):
        s.a("s_mul_i32 s38, s39, 0x9e3779b1\ns_xor_b32 s38, s38, 0x7f4a7c15")
    def spin_head(s, label):
        s.a(f"s_mov_b32 s66, {SPIN}\n{label}:")
    def spin_tail(s, label, tags, t0=54, t1=55):
        def fold(op, dst):
            r = list(tags)
            cur = r.pop(0)
            first = True
            while r:
                if len(r) >= 2:
                    s.a(f"v_{op}3_u32 v{dst}, v{cur}, v{r[0]}, v{r[1]}"); r = r[2:]
                else:
                    s.a(f"v_{op}_u32 v{dst}, v{cur}, v{r[0]}"); r = r[1:]
                cur = dst
        fold("min", t0); fold("max", t1)
        s.a(f"""v_cmp_ne_u32 vcc, s38, v{t0}
        v_cmp_ne_u32 s[72:73], s38, v{t1}
        s_sub_u32 s66, s66, 1
        s_cbranch_scc1 L_exit
        s_or_b64 vcc, vcc, s[72:73]
        s_cbranch_vccnz {label}""")

def build(diag=False, **opt):
    g = G(diag, **opt); a = g.a; c = g.c
    NT = opt.get("nt", "nt")
    a(f"{NAME}:")
    a("s_cmp_ge_u32 s2, 256\ns_cbranch_scc1 L_end")
    if diag:
        for k in range(12): a(f"s_mov_b32 s{76+2*k}, 0")
    g.stamp(0)
    a("""s_load_dwordx16 s[8:23], s[0:1], 0
    s_load_dwordx8 s[24:31], s[0:1], 64
    v_lshrrev_b32 v1, 6, v0
    v_and_b32 v0, 63, v0
    v_readfirstlane_b32 s3, v1
    s_lshr_b32 s4, s2, 3
    s_and_b32 s5, s2, 7
    s_mul_i32 s6, s2, 205
    s_lshr_b32 s32, s6, 11
    s_lshr_b32 s33, s6, 10
    s_mul_i32 s34, s32, 10
    s_sub_u32 s34, s2, s34
    s_mul_i32 s35, s33, 5
    s_sub_u32 s35, s2, s35
    v_lshrrev_b32 v1, 3, v0
    v_and_b32 v2, 7, v0
    s_mov_b32 s60, 0xffff0000
    s_cmp_ge_u32 s3, 4
    s_cbranch_scc1 L_kv""")
    c("waves 0-3: projections of the normalised input")
    c("touch every 128-byte line of this kernel's code so that instruction misses hit in L2")
    a("""s_getpc_b64 s[36:37]
    L_pc:
    s_lshl_b32 s6, s3, 6
    v_add_u32 v4, s6, v0
    v_min_u32 v4, NLINES_M1, v4
    v_mov_b32 v5, 0
    v_lshl_add_u64 v[6:7], v[4:5], 7, s[36:37]
    global_load_dword v9, v[6:7], off
    v_lshlrev_b32 v3, 2, v0
    s_waitcnt lgkmcnt(0)
    s_load_dword s39, s[30:31], 0""")
    g.srd(52, 8, None, 1280)
    for k in range(5): a(f"buffer_load_dword v{10+k}, v3, s[52:55], 0 offen offset:{256*k}")
    g.srd(48, 30, None, 0x400000 if diag else 0x200000)
    a("s_cmp_eq_u32 s3, 3\ns_cbranch_scc1 L_w3")
    c("wq third (wave) of head h, rows 80c..80c+79")
    a("""s_mul_i32 s6, s5, 983040
    s_mul_i32 s7, s4, 384
    s_add_u32 s6, s6, s7
    s_lshl_b32 s7, s3, 7
    s_add_u32 s6, s6, s7""")
    g.srd(40, 14, "s6", 970880)
    a("""v_mul_u32_u24 v8, 12288, v1
    v_lshl_add_u32 v8, v2, 4, v8
    s_mov_b32 s62, 98304
    s_mov_b32 s61, 98304""")
    for u in range(10):
        so = "0" if u == 0 else "s61"
        a(f"buffer_load_dwordx4 v[{64+4*u}:{67+4*u}], v8, s[40:43], {so} offen {NT}")
        if 0 < u < 9: a("s_add_u32 s61, s61, s62")
    g.stamp(1)
    a("s_waitcnt vmcnt(10)\ns_branch L_ln")
    a("L_w3:\ns_cmp_ge_u32 s2, 240\ns_cbranch_scc1 L_w3_skip")
    c("gate / up block fb (64 columns), rows 64m..64m+63")
    a("""s_mul_i32 s6, s34, 196608
    s_lshl_b32 s7, s32, 7
    s_add_u32 s6, s6, s7""")
    g.srd(40, 20, "s6", 193664)
    g.srd(44, 22, "s6", 193664)
    a("""v_mul_u32_u24 v8, 3072, v1
    v_lshl_add_u32 v8, v2, 4, v8
    s_mov_b32 s62, 24576
    s_mov_b32 s61, 24576""")
    for u in range(8):
        so = "0" if u == 0 else "s61"
        a(f"buffer_load_dwordx4 v[{64+8*u}:{67+8*u}], v8, s[40:43], {so} offen {NT}")
        a(f"buffer_load_dwordx4 v[{68+8*u}:{71+8*u}], v8, s[44:47], {so} offen {NT}")
        if 0 < u < 7: a("s_add_u32 s61, s61, s62")
    g.stamp(1)
    a("s_waitcnt vmcnt(16)")
    a("L_ln:")
    g.masks()
    c("layer norm of x (bf16 rounding after every reference op)")
    for k in range(5):
        a(f"v_lshlrev_b32 v{15+2*k}, 16, v{10+k}\nv_and_b32 v{16+2*k}, s60, v{10+k}")
    a("""v_mov_b32 v30, 0x%x
    v_add_f32 v25, v15, v16
    v_add_f32 v26, v17, v18
    v_add_f32 v27, v19, v20
    v_add_f32 v28, v21, v22
    v_add_f32 v29, v23, v24
    v_add_f32 v25, v25, v26
    v_add_f32 v27, v27, v28
    v_add_f32 v25, v25, v29
    v_add_f32 v25, v25, v27""" % INV640)
    g.wave_sum(25, 67)
    g.nop(2)
    a("v_mul_f32 v26, s67, v30")
    for k in range(10): a(f"v_sub_f32 v{32+k}, v{15+k}, v26")
    a("v_mul_f32 v27, v32, v32\nv_mul_f32 v28, v33, v33")
    for k in range(2, 10, 2):
        a(f"v_fmac_f32 v27, v{32+k}, v{32+k}\nv_fmac_f32 v28, v{33+k}, v{33+k}")
    a("v_add_f32 v27, v27, v28")
    g.wave_sum(27, 68)
    g.nop(2)
    a(f"""v_mul_f32 v27, s68, v30
    v_cvt_pk_bf16_f32 v28, v27, v26
    v_lshlrev_b32 v29, 16, v28
    v_and_b32 v26, s60, v28
    v_add_f32 v29, 0x{EPS:x}, v29
    v_cvt_pk_bf16_f32 v29, v29, v29
    v_lshlrev_b32 v29, 16, v29
    v_sqrt_f32 v29, v29
    s_nop 0
    v_cvt_pk_bf16_f32 v29, v29, v29
    v_lshlrev_b32 v29, 16, v29
    v_rcp_f32 v28, v29""")
    for k in range(10): a(f"v_sub_f32 v{32+k}, v{15+k}, v26")
    for k in range(5): a(f"v_cvt_pk_bf16_f32 v{10+k}, v{32+2*k}, v{33+2*k}")
    for k in range(5): a(f"v_lshlrev_b32 v{32+2*k}, 16, v{10+k}\nv_and_b32 v{33+2*k}, s60, v{10+k}")
    for k in range(10): a(f"v_mul_f32 v{42+k}, v{32+k}, v28")
    for k in range(10): a(f"v_fma_f32 v{32+k}, -v{42+k}, v29, v{32+k}")
    for k in range(10): a(f"v_fmac_f32 v{42+k}, v{32+k}, v28")
    for k in range(10): a(f"v_cvt_pk_bf16_f32 v{32+k}, v{42+k}, v{42+k}")
    a("v_lshlrev_b32 v3, 3, v0")
    for k in range(5): a(f"ds_write_b64 v3, v[{32+2*k}:{33+2*k}] offset:{XN+512*k}")
    c("transposition scratch addresses")
    a(f"""v_lshrrev_b32 v9, 5, v0
    v_lshlrev_b32 v9, 8, v9
    v_lshl_add_u32 v9, v2, 5, v9
    v_bfe_u32 v3, v0, 4, 1
    v_lshl_add_u32 v56, v3, 4, v9
    s_lshl_b32 s6, s3, 10
    s_add_u32 s6, s6, {WSCR}
    v_add_u32 v56, s6, v56
    v_lshl_add_u32 v57, v0, 2, s6
    s_mov_b32 s64, 0x00ff00ff
    s_mov_b32 s65, 0xff00ff00
    s_cmp_eq_u32 s3, 3
    s_cbranch_scc1 L_w3b""")
    a("s_mul_i32 s6, s5, 320\nv_lshl_add_u32 v3, v1, 2, s6")
    for u in range(10): a(f"ds_read_b32 v{42+u}, v3 offset:{XN+32*u}")
    a("s_waitcnt lgkmcnt(0)")
    g.tag()
    for u in range(10):
        for r in range(4): a(f"v_and_b32 v{128+4*u+r}, v{42+u}, v{4+r}")
    for u in range(10):
        a(f"s_waitcnt vmcnt({9-u})")
        a(f"v_mfma_f32_16x16x32_bf16 v[192:195], v[{128+4*u}:{131+4*u}], v[{64+4*u}:{67+4*u}], {'0' if u == 0 else 'v[192:195]'}")
    g.stamp(2)
    a(f"""s_mul_i32 s6, s2, 3
    s_add_u32 s6, s6, s3
    s_lshl_b32 s6, s6, 9
    s_add_u32 s6, s6, {QP}
    v_lshlrev_b32 v58, 3, v0
    s_mov_b64 exec, s[64:65]
    s_nop 3
    ds_write_b128 v56, v[192:195]
    s_mov_b64 exec, -1
    ds_read2st64_b32 v[52:53], v57 offset0:0 offset1:1
    s_mul_i32 s69, s4, 24
    s_add_u32 s69, s69, s3
    s_lshl_b32 s69, s69, 9
    s_add_u32 s69, s69, {QP}
    s_add_u32 s70, s69, 4608
    s_add_u32 s71, s69, 9216
    s_waitcnt lgkmcnt(0)
    v_add_f32 v52, v52, v53
    v_mov_b32 v53, s38
    buffer_store_dwordx2 v[52:53], v58, s[48:51], s6 offen sc1""")
    g.stamp(3)
    g.spin_head("L_qspin")
    for cc in range(8):
        so, im = (("s69", cc * 1536) if cc < 3 else ("s70", (cc - 3) * 1536) if cc < 6 else ("s71", (cc - 6) * 1536))
        a(f"buffer_load_dwordx2 v[{64+2*cc}:{65+2*cc}], v58, s[48:51], {so} offen offset:{im} sc1")
    a("s_waitcnt vmcnt(0)")
    g.spin_tail("L_qspin", [65 + 2 * cc for cc in range(8)])
    a("v_add_f32 v52, v64, v66")
    for cc in range(2, 8): a(f"v_add_f32 v52, v52, v{64+2*cc}")
    a(f"""s_lshl_b32 s6, s3, 7
    v_lshl_add_u32 v3, v0, 1, s6
    v_cvt_pk_bf16_f32 v52, v52, v52
    ds_write_b16 v3, v52 offset:{QL}""")
    g.stamp(4)
    a("s_branch L_bar1")
    a("L_w3b:")
    a("s_lshl_b32 s6, s34, 8\nv_lshl_add_u32 v3, v1, 2, s6")
    for u in range(8): a(f"ds_read_b32 v{42+u}, v3 offset:{XN+32*u}")
    a("s_waitcnt lgkmcnt(0)")
    g.tag()
    for u in range(8):
        for r in range(4): a(f"v_and_b32 v{128+4*u+r}, v{42+u}, v{4+r}")
    for u in range(8):
        a(f"s_waitcnt vmcnt({15-2*u})")
        a(f"v_mfma_f32_16x16x32_bf16 v[192:195], v[{128+4*u}:{131+4*u}], v[{64+8*u}:{67+8*u}], {'0' if u == 0 else 'v[192:195]'}")
        a(f"s_waitcnt vmcnt({14-2*u})")
        a(f"v_mfma_f32_16x16x32_bf16 v[196:199], v[{128+4*u}:{131+4*u}], v[{68+8*u}:{71+8*u}], {'0' if u == 0 else 'v[196:199]'}")
    g.stamp(2)
    a(f"""s_lshl_b32 s6, s2, 10
    s_add_u32 s6, s6, {GP}
    v_lshlrev_b32 v58, 4, v0
    s_mov_b64 exec, s[64:65]
    s_nop 3
    ds_write_b128 v56, v[192:195]
    ds_write_b128 v56, v[196:199] offset:512
    s_mov_b64 exec, -1
    ds_read2st64_b32 v[52:53], v57 offset0:0 offset1:1
    ds_read2st64_b32 v[54:55], v57 offset0:2 offset1:3
    s_mul_i32 s69, s32, 10240
    s_and_b32 s7, s33, 1
    s_lshl_b32 s7, s7, 9
    s_add_u32 s69, s69, s7
    s_add_u32 s69, s69, {GP}
    s_add_u32 s70, s69, 4096
    s_add_u32 s71, s69, 8192
    v_lshrrev_b32 v59, 5, v0
    v_lshlrev_b32 v59, 10, v59
    v_and_b32 v3, 31, v0
    v_lshl_add_u32 v59, v3, 4, v59
    s_waitcnt lgkmcnt(0)
    v_add_f32 v52, v52, v53
    v_add_f32 v53, v54, v55
    v_mov_b32 v54, 0
    v_mov_b32 v55, s38
    buffer_store_dwordx4 v[52:55], v58, s[48:51], s6 offen sc1""")
    g.stamp(3)
    g.spin_head("L_gspin")
    for k in range(5):
        so, im = (("s69", 2048 * k) if k < 2 else ("s70", 2048 * (k - 2)) if k < 4 else ("s71", 0))
        a(f"buffer_load_dwordx4 v[{64+4*k}:{67+4*k}], v59, s[48:51], {so} offen offset:{im} sc1")
    a("s_waitcnt vmcnt(0)")
    g.spin_tail("L_gspin", [67 + 4 * k for k in range(5)], 60, 61)
    a("v_add_f32 v52, v64, v68\nv_add_f32 v53, v65, v69")
    for k in range(2, 5): a(f"v_add_f32 v52, v52, v{64+4*k}\nv_add_f32 v53, v53, v{65+4*k}")
    a(f"""v_mov_b32 v54, v52
    v_mov_b32 v55, v53
    s_nop 1
    v_permlane32_swap_b32 v52, v54
    v_permlane32_swap_b32 v53, v55
    s_nop 1
    v_add_f32 v52, v52, v54
    v_add_f32 v53, v53, v55
    v_cvt_pk_bf16_f32 v52, v52, v53
    v_lshlrev_b32 v54, 16, v52
    v_and_b32 v53, s60, v52
    v_cmp_gt_f32 vcc, v54, 0
    v_lshlrev_b32 v3, 2, v3
    s_nop 0
    v_cndmask_b32 v55, 0, 1.0, vcc
    v_mul_f32 v54, v54, v55
    v_mul_f32 v54, v54, v53
    v_cvt_pk_bf16_f32 v54, v54, v54
    ds_write_b32 v3, v54 offset:{HP}""")
    g.stamp(4)
    a("s_branch L_bar1")
    a("L_w3_skip:")
    a("L_bar1:")
    a("s_waitcnt lgkmcnt(0)\ns_barrier")
    g.stamp(5)
    a("s_cmp_ge_u32 s2, 240\ns_cbranch_scc1 L_exit")
    c("W_down rows 32rb+8i.., wo rows 128rb+32i.., columns 128cb..")
    a("""s_lshl_b32 s6, s33, 5
    s_lshl_b32 s7, s3, 3
    s_add_u32 s6, s6, s7
    s_mul_i32 s67, s6, 1280
    s_lshl_b32 s7, s35, 8
    s_add_u32 s67, s67, s7""")
    g.srd(40, 24, "s67", 7 * 1280 + 256)
    a("""s_lshl_b32 s6, s6, 2
    s_mul_i32 s67, s6, 1280
    s_add_u32 s67, s67, s7""")
    g.srd(44, 16, "s67", 31 * 1280 + 256)
    a("""v_lshrrev_b32 v9, 4, v0
    v_and_b32 v3, 15, v0
    v_lshlrev_b32 v3, 4, v3
    v_mul_u32_u24 v8, 2560, v9
    v_add_u32 v8, v8, v3
    v_mul_u32_u24 v10, 10240, v9
    v_add_u32 v10, v10, v3
    s_movk_i32 s61, 5120""")
    for t in range(2): a(f"buffer_load_dwordx4 v[{96+4*t}:{99+4*t}], v8, s[40:43], 0 offen offset:{1280*t} {NT}")
    for t in range(8):
        a(f"buffer_load_dwordx4 v[{64+4*t}:{67+4*t}], v10, s[44:47], {'0' if t < 4 else 's61'} offen offset:{1280*(t&3)} {NT}")
    g.stamp(6)
    a("s_barrier")
    a(f"""s_lshl_b32 s6, s3, 5
    v_lshl_add_u32 v11, v9, 3, s6
    ds_read_b64 v[42:43], v11 offset:{HP}
    s_lshl_b32 s6, s3, 7
    v_lshl_add_u32 v12, v9, 5, s6
    v_and_b32 v3, 15, v0
    v_lshlrev_b32 v3, 5, v3
    v_bfe_u32 v13, v0, 4, 1
    v_lshl_add_u32 v13, v13, 4, v3
    s_lshl_b32 s6, s3, 10
    v_add_u32 v13, s6, v13
    s_waitcnt lgkmcnt(0)""")
    for t in range(2):
        for r in range(4): a(f"v_and_b32 v{160+4*t+r}, v{42+t}, v{4+r}")
    a("s_waitcnt vmcnt(9)")
    a("v_mfma_f32_16x16x32_bf16 v[196:199], v[160:163], v[96:99], 0")
    a("s_waitcnt vmcnt(8)")
    a("v_mfma_f32_16x16x32_bf16 v[196:199], v[164:167], v[100:103], v[196:199]")
    a("s_mov_b32 s64, -1\ns_mov_b32 s65, 0\ns_nop 5\ns_mov_b64 exec, s[64:65]")
    a(f"ds_write_b128 v13, v[196:199] offset:{SB+512}\ns_mov_b64 exec, -1")
    a("s_barrier")
    g.stamp(7)
    a(f"ds_read_b128 v[44:47], v12 offset:{OPK}\nds_read_b128 v[48:51], v12 offset:{OPK+16}\ns_waitcnt lgkmcnt(0)")
    for t in range(8):
        for r in range(4): a(f"v_and_b32 v{128+4*t+r}, v{44+t}, v{4+r}")
    for t in range(8):
        a(f"s_waitcnt vmcnt({7-t})")
        a(f"v_mfma_f32_16x16x32_bf16 v[192:195], v[{128+4*t}:{131+4*t}], v[{64+4*t}:{67+4*t}], {'0' if t == 0 else 'v[192:195]'}")
    a("s_nop 6\ns_mov_b64 exec, s[64:65]")
    a(f"ds_write_b128 v13, v[192:195] offset:{SB}\ns_mov_b64 exec, -1")
    a("s_waitcnt lgkmcnt(0)\ns_barrier")
    g.stamp(8)
    a("s_cmp_ge_u32 s3, 2\ns_cbranch_scc1 L_exit")
    a("s_lshl_b32 s6, s3, 8\nv_lshl_add_u32 v3, v0, 2, s6")
    a(f"""v_add_u32 v3, {SB}, v3
    ds_read2st64_b32 v[52:53], v3 offset0:0 offset1:4
    ds_read2st64_b32 v[54:55], v3 offset0:8 offset1:12
    ds_read2st64_b32 v[56:57], v3 offset0:2 offset1:6
    ds_read2st64_b32 v[58:59], v3 offset0:10 offset1:14
    s_mul_i32 s6, s35, 48
    s_add_u32 s6, s6, s33
    s_lshl_b32 s6, s6, 11
    s_lshl_b32 s7, s3, 10
    s_add_u32 s6, s6, s7
    s_add_u32 s6, s6, {SP}
    v_lshlrev_b32 v9, 4, v0
    s_waitcnt lgkmcnt(0)
    v_add_f32 v52, v52, v53
    v_add_f32 v54, v54, v55
    v_add_f32 v56, v56, v57
    v_add_f32 v58, v58, v59
    v_add_f32 v52, v52, v54
    v_add_f32 v53, v56, v58
    v_mov_b32 v54, 0
    v_mov_b32 v55, s38
    buffer_store_dwordx4 v[52:55], v9, s[48:51], s6 offen sc1""")
    g.stamp(9)
    a("s_branch L_exit")
    a("L_kv:")
    c("waves 4-7: 64 keys each")
    a("""s_sub_u32 s7, s3, 4
    s_mul_i32 s6, s4, 3145728
    s_lshl_b32 s67, s5, 2
    s_add_u32 s67, s67, s7
    s_mul_i32 s67, s67, 24576
    s_add_u32 s6, s6, s67
    s_add_u32 s6, s6, 2359296
    v_mul_u32_u24 v8, 384, v1
    v_lshl_add_u32 v8, v2, 4, v8
    s_movk_i32 s61, 6144
    s_movk_i32 s62, 12288
    s_movk_i32 s63, 18432
    s_waitcnt lgkmcnt(0)
    s_load_dword s39, s[30:31], 0""")
    g.srd(40, 10, "s6", 24576)
    g.srd(44, 12, "s6", 24576)
    KB, VB = 16, 112
    for base, srd in ((KB, 40), (VB, 44)):
        for u in range(8):
            for t in range(3):
                so = ("0", "s61", "s62", "s63")[u >> 1]
                r = base + 12 * u + 4 * t
                a(f"buffer_load_dwordx4 v[{r}:{r+3}], v8, s[{srd}:{srd+3}], {so} offen offset:{(u&1)*3072+t*128} {NT}")
    g.stamp(1)
    g.srd(48, 30, None, 0x400000 if diag else 0x200000)
    g.masks(250)
    a(f"""v_lshlrev_b32 v3, 4, v2
    v_mov_b32 v240, 0x{SCALE:x}
    v_mov_b32 v241, 0x{L2E:x}
    s_waitcnt lgkmcnt(0)""")
    g.tag()
    a("s_barrier")
    g.stamp(5)
    for t in range(3): a(f"ds_read_b128 v[{208+4*t}:{211+4*t}], v3 offset:{QL+128*t}")
    for u in range(8): a(f"v_mov_b32 v{220+u}, 0")
    a("s_waitcnt vmcnt(24) lgkmcnt(0)")
    for t in range(3):
        for r in range(4):
            for u in range(8):
                a(f"v_dot2c_f32_bf16 v{220+u}, v{KB+12*u+4*t+r}, v{208+4*t+r}")
    for ctrl in ("quad_perm:[1,0,3,2]", "quad_perm:[2,3,0,1]", "row_half_mirror"):
        for u in range(8): g.dpp("v_add_f32", 220 + u, ctrl)
    c("scores: bf16(bf16(q.k) * scale)")
    for p in range(4): a(f"v_cvt_pk_bf16_f32 v{242+p}, v{220+2*p}, v{221+2*p}")
    for p in range(4): a(f"v_lshlrev_b32 v{220+2*p}, 16, v{242+p}\nv_and_b32 v{221+2*p}, s60, v{242+p}")
    for u in range(8): a(f"v_mul_f32 v{220+u}, v{220+u}, v240")
    for p in range(4): a(f"v_cvt_pk_bf16_f32 v{242+p}, v{220+2*p}, v{221+2*p}")
    for p in range(4): a(f"v_lshlrev_b32 v{220+2*p}, 16, v{242+p}\nv_and_b32 v{221+2*p}, s60, v{242+p}")
    a("""v_max3_f32 v246, v220, v221, v222
    v_max3_f32 v247, v223, v224, v225
    v_max3_f32 v246, v246, v226, v227
    v_max_f32 v246, v246, v247""")
    for ctrl, m in (("row_ror:8", "0xf"), ("row_bcast:15", "0xa"), ("row_bcast:31", "0xc")):
        g.nop(2); g.dpp("v_max_f32", 246, ctrl, m)
    g.nop(1); a("v_readlane_b32 s67, v246, 63"); g.nop(2)
    for u in range(8): a(f"v_subrev_f32 v{220+u}, s67, v{220+u}")
    for u in range(8): a(f"v_mul_f32 v{220+u}, v{220+u}, v241")
    for u in range(8): a(f"v_exp_f32 v{220+u}, v{220+u}")
    a("""s_nop 0
    v_add_f32 v246, v220, v221
    v_add_f32 v247, v222, v223
    v_add_f32 v248, v224, v225
    v_add_f32 v249, v226, v227""")
    for u in range(8): a(f"v_cvt_pk_bf16_f32 v{220+u}, v{220+u}, v{220+u}")
    a("v_add_f32 v246, v246, v247\nv_add_f32 v248, v248, v249\nv_add_f32 v246, v246, v248")
    for u in range(8):
        for r in range(4): a(f"v_and_b32 v{KB+4*u+r}, v{220+u}, v{4+r}")
    for ctrl, m in (("row_ror:8", "0xf"), ("row_bcast:15", "0xa"), ("row_bcast:31", "0xc")):
        g.nop(2); g.dpp("v_add_f32", 246, ctrl, m)
    g.nop(1); a("v_readlane_b32 s68, v246, 63")
    g.stamp(6)
    for u in range(8):
        for t in range(3):
            a(f"s_waitcnt vmcnt({23-3*u-t})")
            r = VB + 12 * u + 4 * t
            a(f"v_mfma_f32_16x16x32_bf16 v[{228+4*t}:{231+4*t}], v[{KB+4*u}:{KB+4*u+3}], v[{r}:{r+3}], {'0' if u == 0 else 'v[%d:%d]' % (228+4*t, 231+4*t)}")
    g.stamp(7)
    a(f"""s_mul_i32 s6, s7, 1536
    s_add_u32 s6, s6, {OW}
    v_lshrrev_b32 v9, 5, v0
    v_mul_u32_u24 v9, 768, v9
    v_lshl_add_u32 v9, v2, 5, v9
    v_bfe_u32 v10, v0, 4, 1
    v_lshl_add_u32 v9, v10, 4, v9
    v_add_u32 v9, s6, v9
    s_lshl_b32 s6, s7, 3
    v_mov_b32 v10, s6
    v_mov_b32 v12, s67
    v_mov_b32 v13, s68
    s_mov_b32 s64, 0x00ff00ff
    s_mov_b32 s65, 0xff00ff00
    s_mov_b64 exec, 1
    ds_write_b64 v10, v[12:13] offset:{MLW}
    s_mov_b64 exec, s[64:65]""")
    for t in range(3): a(f"ds_write_b128 v9, v[{228+4*t}:{231+4*t}] offset:{256*t}")
    a("s_mov_b64 exec, -1\ns_waitcnt lgkmcnt(0)\ns_barrier")
    g.stamp(8)
    a("s_cmp_eq_u32 s7, 3\ns_cbranch_scc1 L_exit")
    c("waves 4-6: merge the four key groups, publish 64 dims each")
    a(f"""v_mov_b32 v9, 0
    ds_read_b128 v[16:19], v9 offset:{MLW}
    ds_read_b128 v[20:23], v9 offset:{MLW+16}
    s_lshl_b32 s6, s7, 8
    s_add_u32 s6, s6, {OW}
    v_lshl_add_u32 v10, v0, 2, s6""")
    for j in range(4): a(f"ds_read2st64_b32 v[{24+2*j}:{25+2*j}], v10 offset0:{6*j} offset1:{6*j+3}")
    a(f"""s_mul_i32 s6, s2, 3
    s_add_u32 s6, s6, s7
    s_lshl_b32 s6, s6, 9
    s_add_u32 s6, s6, {OP}
    s_lshl_b32 s67, s2, 4
    s_add_u32 s67, s67, {MLO}
    v_lshlrev_b32 v58, 3, v0
    s_waitcnt lgkmcnt(0)
    v_max3_f32 v32, v16, v18, v20
    v_max_f32 v32, v32, v22
    v_add_f32 v24, v24, v25
    v_add_f32 v26, v26, v27
    v_add_f32 v28, v28, v29
    v_add_f32 v30, v30, v31
    v_sub_f32 v16, v16, v32
    v_sub_f32 v18, v18, v32
    v_sub_f32 v20, v20, v32
    v_sub_f32 v22, v22, v32
    v_mul_f32 v16, v16, v241
    v_mul_f32 v18, v18, v241
    v_mul_f32 v20, v20, v241
    v_mul_f32 v22, v22, v241
    v_exp_f32 v16, v16
    v_exp_f32 v18, v18
    v_exp_f32 v20, v20
    v_exp_f32 v22, v22
    s_nop 0
    v_mul_f32 v34, v16, v24
    v_mul_f32 v33, v16, v17
    v_fmac_f32 v34, v18, v26
    v_fmac_f32 v33, v18, v19
    v_fmac_f32 v34, v20, v28
    v_fmac_f32 v33, v20, v21
    v_fmac_f32 v34, v22, v30
    v_fmac_f32 v33, v22, v23
    v_mov_b32 v35, s38
    buffer_store_dwordx2 v[34:35], v58, s[48:51], s6 offen sc1
    s_cmp_eq_u32 s7, 2
    s_cbranch_scc0 L_noml
    v_mov_b32 v36, v32
    v_mov_b32 v37, v33
    v_mov_b32 v38, 0
    v_mov_b32 v39, s38
    v_mov_b32 v9, 0
    s_mov_b64 exec, 1
    buffer_store_dwordx4 v[36:39], v9, s[48:51], s67 offen sc1
    s_mov_b64 exec, -1""")
    g.stamp(9)
    a("s_branch L_exit\nL_noml:")
    g.stamp(9)
    a("s_cmp_ge_u32 s2, 240\ns_cbranch_scc1 L_exit")
    c("waves 4,5: gather one 64-dim unit of the attention output from 8 key chunks")
    a(f"""s_lshl_b32 s6, s33, 1
    s_add_u32 s6, s6, s7
    s_mul_i32 s67, s6, 171
    s_lshr_b32 s67, s67, 9
    s_mul_i32 s68, s67, 3
    s_sub_u32 s68, s6, s68
    s_mul_i32 s69, s67, 24
    s_add_u32 s69, s69, s68
    s_lshl_b32 s69, s69, 9
    s_add_u32 s69, s69, {OP}
    s_add_u32 s70, s69, 4608
    s_add_u32 s71, s69, 9216
    s_lshl_b32 s67, s67, 7
    s_add_u32 s67, s67, {MLO}
    v_lshlrev_b32 v59, 4, v2""")
    g.spin_head("L_ospin")
    a("buffer_load_dwordx4 v[60:63], v59, s[48:51], s67 offen sc1")
    for cc in range(8):
        so, im = (("s69", cc * 1536) if cc < 3 else ("s70", (cc - 3) * 1536) if cc < 6 else ("s71", (cc - 6) * 1536))
        a(f"buffer_load_dwordx2 v[{64+2*cc}:{65+2*cc}], v58, s[48:51], {so} offen offset:{im} sc1")
    a("s_waitcnt vmcnt(0)")
    g.spin_tail("L_ospin", [63] + [65 + 2 * cc for cc in range(8)])
    g.stamp(10)
    a("v_mov_b32 v40, v60")
    for ctrl in ("quad_perm:[1,0,3,2]", "quad_perm:[2,3,0,1]", "row_half_mirror"):
        g.nop(2); g.dpp("v_max_f32", 40, ctrl)
    a("""v_sub_f32 v40, v60, v40
    v_mul_f32 v40, v40, v241
    v_exp_f32 v40, v40
    s_nop 0
    v_mul_f32 v41, v40, v61""")
    for ctrl in ("quad_perm:[1,0,3,2]", "quad_perm:[2,3,0,1]", "row_half_mirror"):
        g.nop(2); g.dpp("v_add_f32", 41, ctrl)
    a("""v_rcp_f32 v42, v41
    s_nop 0
    v_mul_f32 v43, v40, v42
    v_fma_f32 v44, -v43, v41, v40
    v_fmac_f32 v43, v44, v42
    s_nop 1""")
    a("v_mul_f32_dpp v44, v43, v64 row_newbcast:0 row_mask:0xf bank_mask:0xf")
    for cc in range(1, 8): a(f"v_fmac_f32_dpp v44, v43, v{64+2*cc} row_newbcast:{cc} row_mask:0xf bank_mask:0xf")
    a(f"""s_lshl_b32 s6, s7, 8
    v_lshl_add_u32 v9, v0, 2, s6
    v_cvt_pk_bf16_f32 v44, v44, v44
    ds_write_b32 v9, v44 offset:{OPK}
    s_waitcnt lgkmcnt(0)
    s_barrier""")
    a("s_cmp_eq_u32 s7, 0\ns_cbranch_scc0 L_exit")
    a("s_cmp_ge_u32 s2, 80\ns_cbranch_scc1 L_exit")
    c("wave 4 of workgroups 0-79: final reduction for 8 output columns")
    a(f"""s_lshr_b32 s6, s2, 4
    s_and_b32 s7, s2, 15
    s_lshl_b32 s67, s6, 4
    s_add_u32 s67, s67, s7
    s_lshl_b32 s67, s67, 4""")
    g.srd(52, 8, "s67", 16)
    g.srd(56, 26, "s67", 16)
    a(f"""v_lshlrev_b32 v10, 1, v2
    buffer_load_ushort v11, v10, s[52:55], 0 offen
    s_mul_i32 s69, s6, 98304
    s_lshl_b32 s7, s7, 7
    s_add_u32 s69, s69, s7
    s_add_u32 s69, s69, {SP}
    v_lshlrev_b32 v9, 11, v1
    v_lshl_add_u32 v9, v2, 4, v9
    s_barrier""")
    a("s_mov_b32 s70, 16384")
    g.spin_head("L_fspin")
    a("s_mov_b32 s71, s69")
    for i in range(6):
        a(f"buffer_load_dwordx4 v[{64+4*i}:{67+4*i}], v9, s[48:51], s71 offen sc1")
        if i < 5: a("s_add_u32 s71, s71, s70")
    a("s_waitcnt vmcnt(0)")
    g.spin_tail("L_fspin", [67 + 4 * i for i in range(6)])
    g.stamp(11)
    a("""v_add_f32 v52, v64, v68
    v_add_f32 v53, v65, v69
    v_add_f32 v54, v72, v76
    v_add_f32 v55, v73, v77
    v_add_f32 v56, v80, v84
    v_add_f32 v57, v81, v85
    v_add_f32 v52, v52, v54
    v_add_f32 v53, v53, v55
    v_add_f32 v52, v52, v56
    v_add_f32 v53, v53, v57
    s_nop 0""")
    g.dpp("v_add_f32", 52, "row_ror:8"); g.dpp("v_add_f32", 53, "row_ror:8")
    for sw in ("v_permlane16_swap_b32", "v_permlane32_swap_b32"):
        a(f"""v_mov_b32 v54, v52
        v_mov_b32 v55, v53
        s_nop 1
        {sw} v52, v54
        {sw} v53, v55
        s_nop 1
        v_add_f32 v52, v52, v54
        v_add_f32 v53, v53, v55""")
    a(f"""v_cvt_pk_bf16_f32 v52, v52, v53
    v_lshlrev_b32 v54, 16, v52
    v_and_b32 v53, s60, v52
    v_mul_f32 v55, v53, v241
    v_exp_f32 v55, -v55
    s_nop 0
    v_add_f32 v55, 1.0, v55
    v_rcp_f32 v56, v55
    s_nop 0
    v_mul_f32 v57, v53, v56
    v_fma_f32 v58, -v57, v55, v53
    v_fmac_f32 v57, v58, v56
    v_cvt_pk_bf16_f32 v57, v57, v57
    v_lshlrev_b32 v57, 16, v57
    v_mul_f32 v54, v54, v57
    v_cvt_pk_bf16_f32 v54, v54, v54
    v_lshlrev_b32 v54, 16, v54
    v_lshlrev_b32 v11, 16, v11
    v_add_f32 v54, v11, v54
    v_cvt_pk_bf16_f32 v54, v54, v54
    s_add_u32 s39, s39, 1
    v_mov_b32 v12, s39
    v_mov_b32 v13, 0
    s_mov_b64 exec, 0xff
    buffer_store_short v54, v10, s[56:59], 0 offen
    s_cmp_eq_u32 s2, 0
    s_cbranch_scc0 L_exit
    s_mov_b64 exec, 1
    buffer_store_dword v12, v13, s[48:51], 0 offen sc1""")
    a("L_exit:")
    if diag:
        a("s_mov_b64 exec, -1\ns_waitcnt vmcnt(0) lgkmcnt(0)\ns_memrealtime s[100:101]\ns_waitcnt lgkmcnt(0)")
        a(f"s_lshl_b32 s6, s2, 3\ns_add_u32 s6, s6, s3\ns_lshl_b32 s6, s6, 6\ns_add_u32 s6, s6, {STAMP}")
        for k in range(12): a(f"v_mov_b32 v{16+k}, s{76+2*k}")
        a("v_mov_b32 v28, s100\ns_getreg_b32 s7, hwreg(HW_REG_XCC_ID)\nv_mov_b32 v29, s7\nv_mov_b32 v30, s66\nv_mov_b32 v31, s38\nv_mov_b32 v9, 0\ns_mov_b64 exec, 1")
        g.srd(48, 30, None, 0x400000)
        for k in range(4): a(f"buffer_store_dwordx4 v[{16+4*k}:{19+4*k}], v9, s[48:51], s6 offen offset:{16*k}")
    a("L_end:\ns_endpgm\nL_codeend:")
    return g.L

HEAD = """; Fused decode step: layer norm, sliding-window attention (32 heads, last 2048 keys), output
; projection, ReGLU branch and the gated residual, in one launch of 256 workgroups x 8 waves.
; @launch grid=(256,1,1) block=(512,1,1) lds=%d
.amdgcn_target "amdgcn-amd-amdhsa--gfx950"
.text
.globl %s
.p2align 8
.type %s,@function
""" % (LDS_BYTES, NAME, NAME)
TAIL = """.section .rodata,"a"
.p2align 6
.amdhsa_kernel %s
  .amdhsa_next_free_vgpr 256
  .amdhsa_next_free_sgpr 102
  .amdhsa_accum_offset 256
  .amdhsa_group_segment_fixed_size 0
  .amdhsa_kernarg_size 96
  .amdhsa_user_sgpr_count 2
  .amdhsa_user_sgpr_kernarg_segment_ptr 1
  .amdhsa_float_denorm_mode_32 3
  .amdhsa_system_sgpr_workgroup_id_x 1
.end_amdhsa_kernel
""" % NAME

def render(diag=False, **opt):
    import subprocess, re, os, tempfile
    lines = build(diag, **opt)
    def text(nl):
        body = "\n".join(("" if (l.endswith(":") or l.startswith(";")) else "    ") + l for l in lines).replace("NLINES_M1", str(nl))
        return HEAD + body + "\n" + TAIL
    t = text(1000)
    d = tempfile.mkdtemp()
    open(d + "/a.s", "w").write(t)
    subprocess.run(["clang", "-x", "assembler", "-target", "amdgcn-amd-amdhsa", "-mcpu=gfx950", "-c", d + "/a.s", "-o", d + "/a.o"], check=True)
    sym = subprocess.run(["llvm-objdump", "-t", d + "/a.o"], capture_output=True, text=True).stdout
    ad = {m.group(2): int(m.group(1), 16) for m in re.finditer(r"^([0-9a-f]{16}) .*\s(L_\w+)$", sym, re.M)}
    size = ad["L_codeend"] - ad["L_pc"]
    nl = (size - 4) // 128
    assert nl < 256
    return text(nl), ad["L_codeend"]

if __name__ == "__main__":
    import hazard
    diag = "diag" in sys.argv
    out = [x for x in sys.argv[1:] if x.endswith(".s")][0]
    t, size = render(diag)
    errs = hazard.check(t)
    for e in errs: print("HAZARD", e)
    open(out, "w").write(t)
    print("wrote", out, "code bytes", size, "hazards", len(errs))
```
